```python
import torch

def _softmax(x, axis=-1):
    return torch.softmax(x, dim=axis)
def _gelu(x):
    return torch.nn.functional.gelu(x, approximate="tanh")
def _silu(x):
    return torch.nn.functional.silu(x)
def _sigmoid(x):
    return torch.sigmoid(x)
def _layernorm(x, axis=-1, eps=1e-5):
    m = x.mean(dim=axis, keepdim=True)
    v = x.var(dim=axis, keepdim=True, unbiased=False)
    return (x - m) / torch.sqrt(v + eps)
def _scatter_add(tgt, idx, src, axis=0):
    return tgt.clone().index_add_(axis, idx, src)
def _segment_sum(src, seg, n):
    out = torch.zeros((n,) + src.shape[1:], dtype=src.dtype)
    return out.index_add_(0, seg, src)
def _pad(x, pw):
    flat = tuple(v for pair in reversed(pw) for v in pair)
    return torch.nn.functional.pad(x, flat)

kernel_name = 'standalone__layernorm_linear__sampling'

def setup_inputs():

    _w = (lambda a: (lambda t: t.to(torch.bfloat16) if t.is_floating_point() else t)(torch.as_tensor(a)))
    B, S, D = 1024, 16, 448
    return {
        "x": _w((lambda *s: torch.randn(*s, dtype=torch.bfloat16) * 0.05)(B, S, D)),
        "g": _w((lambda *s: torch.randn(*s, dtype=torch.bfloat16) * 0.05)(D) + 1.0),
        "b": _w((lambda *s: torch.randn(*s, dtype=torch.bfloat16) * 0.4)(D)),
        "w": _w((lambda *s: torch.randn(*s, dtype=torch.bfloat16) * 0.05)(D, D)),
    }

def reference(x, g, b, w):
    return (_layernorm(x, axis=-1) * g + b) @ w
```

```python
import sys

HEADER = """; Kernarg layout for this problem (56 bytes, ptrs only, base s[0:1]):
; @launch grid=(256,1,1) block=(256,1,1) lds=%d
.amdgcn_target "amdgcn-amd-amdhsa--gfx950"
.text
.globl standalone__layernorm_linear__sampling_kernel
.p2align 8
.type standalone__layernorm_linear__sampling_kernel,@function
standalone__layernorm_linear__sampling_kernel:
"""
FOOTER = """L_end:
s_endpgm
.section .rodata,"a"
.p2align 6
.amdhsa_kernel standalone__layernorm_linear__sampling_kernel
  .amdhsa_next_free_vgpr %d
  .amdhsa_next_free_sgpr %d
  .amdhsa_accum_offset 256
  .amdhsa_group_segment_fixed_size 0
  .amdhsa_kernarg_size 56
  .amdhsa_user_sgpr_count 2
  .amdhsa_user_sgpr_kernarg_segment_ptr 1
  .amdhsa_system_sgpr_workgroup_id_x 1
  .amdhsa_float_denorm_mode_32 3
  .amdhsa_float_denorm_mode_16_64 3
.end_amdhsa_kernel
"""

out = []
def e(s):
    out.append("    " + s)

RB = 896
XBYTES = 16384 * RB
WBYTES = 448 * RB
TILEB = 448 * 64
GB = 5 * TILEB
LDS = GB + 4096

sX, sW, sO, sG, sB = 16, 20, 24, 28, 32
s_wave = 36
s_xoff0, s_xoff1 = 37, 38
s_woff = 39
s_tmp = 40
s_tmp2 = 41
s_ooff0, s_ooff1 = 42, 43
s_m0base = 44
s_mask = 45

X0 = 0
def X(G, i): return X0 + (i*2+G)*4
ACC = 112
GBR = 176
T = 192
v_xoff = 208
v_woff = 209
v_tr = [210, 211, 212]
v_gb = 213
v_ooff = 214
v_p = [216, 218]
v_sum = [220, 222]
v_sq = [224, 226]
v_rs = [228, 230]
v_nm = [232, 234]
v_l = 236
v_t2 = 237
v_t3 = 238
v_t4 = 239
PK = 240

e("s_cmp_ge_u32 s2, 256")
e("s_cbranch_scc1 L_end")
e("s_load_dwordx8 s[4:11], s[0:1], 0")
e("s_load_dwordx2 s[12:13], s[0:1], 32")
e(f"v_lshrrev_b32 v{v_t2}, 6, v0")
e(f"v_and_b32 v{v_l}, 63, v0")
e(f"v_readfirstlane_b32 s{s_wave}, v{v_t2}")
e(f"s_lshr_b32 s{s_tmp}, s2, 4")
e(f"s_lshl_b32 s{s_tmp}, s{s_tmp}, 3")
e(f"s_and_b32 s{s_tmp2}, s2, 7")
e(f"s_add_u32 s{s_tmp}, s{s_tmp}, s{s_tmp2}")
e(f"s_lshl_b32 s{s_tmp}, s{s_tmp}, 2")
e(f"s_add_u32 s{s_tmp}, s{s_tmp}, s{s_wave}")
e(f"s_mul_i32 s{s_xoff0}, s{s_tmp}, {32*RB}")
e(f"s_add_u32 s{s_xoff1}, s{s_xoff0}, {16*RB}")
e(f"s_lshr_b32 s{s_tmp2}, s2, 3")
e(f"s_and_b32 s{s_tmp2}, s{s_tmp2}, 1")
e(f"s_mul_i32 s{s_tmp2}, s{s_tmp2}, 448")
e(f"s_add_u32 s{s_ooff0}, s{s_xoff0}, s{s_tmp2}")
e(f"s_add_u32 s{s_ooff1}, s{s_xoff1}, s{s_tmp2}")
e(f"s_mul_i32 s{s_woff}, s{s_wave}, {16*RB}")
e(f"s_add_u32 s{s_woff}, s{s_woff}, s{s_tmp2}")
e(f"s_lshl_b32 s{s_m0base}, s{s_wave}, 10")
e(f"s_mov_b32 s{s_mask}, 0xffff0000")
e(f"v_and_b32 v{v_t2}, 15, v{v_l}")
e(f"v_mul_u32_u24 v{v_t2}, {RB}, v{v_t2}")
e(f"v_lshrrev_b32 v{v_t3}, 4, v{v_l}")
e(f"v_lshl_add_u32 v{v_xoff}, v{v_t3}, 4, v{v_t2}")
e(f"v_lshlrev_b32 v{v_gb}, 6, v{v_t3}")
e(f"v_add_u32 v{v_gb}, {GB}, v{v_gb}")
e(f"v_lshrrev_b32 v{v_t3}, 2, v{v_l}")
e(f"v_mul_u32_u24 v{v_t3}, {RB}, v{v_t3}")
e(f"v_and_b32 v{v_t4}, 3, v{v_l}")
e(f"v_lshl_add_u32 v{v_woff}, v{v_t4}, 4, v{v_t3}")
e(f"v_lshrrev_b32 v{v_t3}, 5, v{v_l}")
e(f"v_lshlrev_b32 v{v_tr[0]}, 10, v{v_t3}")
e(f"v_bfe_u32 v{v_t3}, v{v_l}, 2, 2")
e(f"v_lshl_add_u32 v{v_tr[0]}, v{v_t3}, 6, v{v_tr[0]}")
e(f"v_and_b32 v{v_t3}, 1, v{v_l}")
e(f"v_lshl_add_u32 v{v_tr[0]}, v{v_t3}, 5, v{v_tr[0]}")
e(f"v_bfe_u32 v{v_t3}, v{v_l}, 4, 1")
e(f"v_lshl_add_u32 v{v_tr[0]}, v{v_t3}, 4, v{v_tr[0]}")
e(f"v_bfe_u32 v{v_t3}, v{v_l}, 1, 1")
e(f"v_lshl_add_u32 v{v_tr[0]}, v{v_t3}, 3, v{v_tr[0]}")
e(f"v_add_u32 v{v_tr[1]}, 0x10000, v{v_tr[0]}")
e(f"v_add_u32 v{v_tr[2]}, 0x20000, v{v_tr[0]}")
e("s_waitcnt lgkmcnt(0)")
def srd(s, lo, nbytes):
    e(f"s_mov_b32 s{s}, s{lo}")
    e(f"s_and_b32 s{s+1}, s{lo+1}, 0xffff")
    e(f"s_mov_b32 s{s+2}, {nbytes}")
    e(f"s_mov_b32 s{s+3}, 0x20000")
srd(sX, 4, XBYTES)
srd(sG, 6, 896)
srd(sB, 8, 896)
srd(sW, 10, WBYTES)
srd(sO, 12, XBYTES)
e(f"v_lshlrev_b32 v{v_t3}, 4, v{v_l}")
e(f"buffer_load_dwordx4 v[{T}:{T+3}], v{v_t3}, s[{sG}:{sG+3}], 0 offen")
e(f"buffer_load_dwordx4 v[{T+4}:{T+7}], v{v_t3}, s[{sB}:{sB+3}], 0 offen")
e(f"buffer_load_ushort v{v_p[0]}, v{v_t2}, s[{sX}:{sX+3}], s{s_xoff0} offen")
e(f"buffer_load_ushort v{v_p[1]}, v{v_t2}, s[{sX}:{sX+3}], s{s_xoff1} offen")
for i in range(14):
    for G in range(2):
        so = s_xoff0 if G == 0 else s_xoff1
        e(f"buffer_load_dwordx4 v[{X(G,i)}:{X(G,i)+3}], v{v_xoff}, s[{sX}:{sX+3}], s{so} offen offset:{i*64}")
nvm = 4 + 28
def dma(t, slot, q):
    e(f"s_add_u32 m0, s{s_m0base}, {slot*TILEB + q*4096}")
    e(f"s_add_u32 s{s_tmp}, s{s_woff}, {t*64 + q*64*RB}")
    e(f"buffer_load_dwordx4 v{v_woff}, s[{sW}:{sW+3}], s{s_tmp} offen lds")
for q in range(7):
    for t in range(4):
        dma(t, t, q)
e("s_waitcnt vmcnt(58)")
e(f"v_lshlrev_b32 v{v_t3}, 6, v{v_l}")
e(f"v_add_u32 v{v_t3}, {GB}, v{v_t3}")
for which in range(2):
    for d in range(4):
        src = T + which*4 + d
        e(f"v_lshlrev_b32 v{GBR+which*8+2*d}, 16, v{src}")
        e(f"v_and_b32 v{GBR+which*8+2*d+1}, s{s_mask}, v{src}")
for q in range(4):
    e(f"ds_write_b128 v{v_t3}, v[{GBR+4*q}:{GBR+4*q+3}] offset:{16*q}")
e("s_waitcnt vmcnt(56)")
for G in range(2):
    e(f"v_lshlrev_b32 v{v_p[G]}, 16, v{v_p[G]}")
    e(f"v_mov_b32 v{v_sum[G]}, 0")
    e(f"v_mov_b32 v{v_sum[G]+1}, 0")
    e(f"v_mov_b32 v{v_sq[G]}, 0")
    e(f"v_mov_b32 v{v_sq[G]+1}, 0")
for i in range(14):
    for G in range(2):
        idx = i*2+G
        e(f"s_waitcnt vmcnt({56 - idx - 1})")
        for d in range(4):
            src = X(G,i)+d
            tt = T + 2*d
            e(f"v_lshlrev_b32 v{tt}, 16, v{src}")
            e(f"v_and_b32 v{tt+1}, s{s_mask}, v{src}")
        for d in range(4):
            tt = T + 2*d
            e(f"v_pk_add_f32 v[{tt}:{tt+1}], v[{tt}:{tt+1}], v[{v_p[G]}:{v_p[G]+1}] op_sel_hi:[1,0] neg_lo:[0,1] neg_hi:[0,1]")
        for d in range(4):
            tt = T + 2*d
            e(f"v_pk_add_f32 v[{v_sum[G]}:{v_sum[G]+1}], v[{v_sum[G]}:{v_sum[G]+1}], v[{tt}:{tt+1}]")
            e(f"v_pk_fma_f32 v[{v_sq[G]}:{v_sq[G]+1}], v[{tt}:{tt+1}], v[{tt}:{tt+1}], v[{v_sq[G]}:{v_sq[G]+1}]")
for q in range(7):
    dma(4, 4, q)
for r in (v_sum, v_sq):
    for G in range(2):
        e(f"v_add_f32 v{r[G]}, v{r[G]}, v{r[G]+1}")
for r in (v_sum, v_sq):
    a, b = r[0], r[1]
    e("s_nop 1")
    e(f"v_permlane16_swap_b32 v{a}, v{b}")
    e("s_nop 1")
    e(f"v_add_f32 v{a}, v{a}, v{b}")
    e(f"v_mov_b32 v{b}, v{a}")
    e("s_nop 1")
    e(f"v_permlane32_swap_b32 v{a}, v{b}")
    e("s_nop 1")
    e(f"v_add_f32 v{a}, v{a}, v{b}")
    e(f"v_mov_b32 v{b}, v{a}")
    e("s_nop 1")
    e(f"v_permlane16_swap_b32 v{a}, v{b}")
    e("s_nop 1")
inv = 1.0/448
import struct
def f2u(f): return struct.unpack("<I", struct.pack("<f", f))[0]
for G in range(2):
    e(f"v_mul_f32 v{v_sum[G]}, 0x{f2u(inv):08x}, v{v_sum[G]}")
    e(f"v_mul_f32 v{v_sq[G]}, 0x{f2u(inv):08x}, v{v_sq[G]}")
    e(f"v_fma_f32 v{v_sq[G]}, -v{v_sum[G]}, v{v_sum[G]}, v{v_sq[G]}")
    e(f"v_max_f32 v{v_sq[G]}, 0, v{v_sq[G]}")
    e(f"v_add_f32 v{v_sq[G]}, 0x{f2u(1e-5):08x}, v{v_sq[G]}")
    e(f"v_rsq_f32 v{v_rs[G]}, v{v_sq[G]}")
    e(f"v_add_f32 v{v_sum[G]}, v{v_sum[G]}, v{v_p[G]}")
    e(f"v_mul_f32 v{v_nm[G]}, v{v_sum[G]}, v{v_rs[G]}")
    e(f"v_sub_f32 v{v_nm[G]}, 0, v{v_nm[G]}")
e("s_waitcnt vmcnt(7) lgkmcnt(0)")
e("s_barrier")

def normalize(i):
    for q in range(4):
        e(f"ds_read_b128 v[{GBR+4*q}:{GBR+4*q+3}], v{v_gb} offset:{i*256 + q*16}")
    for G in range(2):
        for d in range(4):
            src = X(G,i)+d
            tt = T + G*8 + 2*d
            e(f"v_lshlrev_b32 v{tt}, 16, v{src}")
            e(f"v_and_b32 v{tt+1}, s{s_mask}, v{src}")
        for d in range(4):
            tt = T + G*8 + 2*d
            e(f"v_pk_fma_f32 v[{tt}:{tt+1}], v[{tt}:{tt+1}], v[{v_rs[G]}:{v_rs[G]+1}], v[{v_nm[G]}:{v_nm[G]+1}] op_sel_hi:[1,0,0]")
    e("s_waitcnt lgkmcnt(0)")
    for G in range(2):
        for d in range(4):
            tt = T + G*8 + 2*d
            e(f"v_pk_fma_f32 v[{tt}:{tt+1}], v[{tt}:{tt+1}], v[{GBR+2*d}:{GBR+2*d+1}], v[{GBR+8+2*d}:{GBR+8+2*d+1}]")
        for d in range(4):
            tt = T + G*8 + 2*d
            e(f"v_cvt_pk_bf16_f32 v{X(G,i)+d}, v{tt}, v{tt+1}")
    e("s_nop 1")
    for d in range(4):
        e(f"v_permlane16_swap_b32 v{X(0,i)+d}, v{X(1,i)+d}")

def trread(areg, slot, s):
    i, u = s >> 1, s & 1
    off = slot*TILEB + i*2048 + u*512
    for half in range(2):
        o = off + half*256
        seg = o >> 16
        e(f"ds_read_b64_tr_b16 a[{areg+2*half}:{areg+2*half+1}], v{v_tr[seg]} offset:{o & 0xffff}")

def yfrag(s):
    i, u = s >> 1, s & 1
    return X(u, i)

def store_tile(t, acc):
    e("s_nop 15")
    for d in range(8):
        e(f"v_cvt_pk_bf16_f32 v{PK+d}, v{acc+2*d}, v{acc+2*d+1}")
    e("s_nop 1")
    for d in range(4):
        e(f"v_permlane16_swap_b32 v{PK+d}, v{PK+4+d}")
    e(f"buffer_store_dwordx4 v[{PK}:{PK+3}], v{v_xoff}, s[{sO}:{sO+3}], s{s_ooff0} offen offset:{t*64}")
    e(f"buffer_store_dwordx4 v[{PK+4}:{PK+7}], v{v_xoff}, s[{sO}:{sO+3}], s{s_ooff1} offen offset:{t*64}")
    e("s_nop 1")

for i in range(14):
    normalize(i)
    for u in range(2):
        s = 2*i+u
        for t in range(4):
            trread(u*16 + t*4, t, s)
    for u in range(2):
        s = 2*i+u
        e(f"s_waitcnt lgkmcnt({8 if u == 0 else 0})")
        for t in range(4):
            c = "0" if s == 0 else f"v[{ACC+16*t}:{ACC+16*t+15}]"
            e(f"v_mfma_f32_32x32x16_bf16 v[{ACC+16*t}:{ACC+16*t+15}], a[{u*16+t*4}:{u*16+t*4+3}], v[{yfrag(s)}:{yfrag(s)+3}], {c}")
e("s_waitcnt vmcnt(0) lgkmcnt(0)")
e("s_barrier")
for q in range(7):
    dma(5, 0, q)
for q in range(7):
    dma(6, 1, q)
for t in range(4):
    store_tile(t, ACC+16*t)
def single(t, slot, acc):
    for s in range(4):
        trread(s*4, slot, s)
    for bt in range(7):
        cur = (bt & 1)*16
        nxt = 16 - cur
        if bt < 6:
            for s in range(4):
                trread(nxt + s*4, slot, (bt+1)*4 + s)
            e("s_waitcnt lgkmcnt(8)")
        else:
            e("s_waitcnt lgkmcnt(0)")
        for s in range(4):
            ks = bt*4 + s
            c = "0" if ks == 0 else f"v[{acc}:{acc+15}]"
            e(f"v_mfma_f32_32x32x16_bf16 v[{acc}:{acc+15}], a[{cur+s*4}:{cur+s*4+3}], v[{yfrag(ks)}:{yfrag(ks)+3}], {c}")
single(4, 4, ACC)
e("s_waitcnt vmcnt(8)")
e("s_barrier")
store_tile(4, ACC)
single(5, 0, ACC+16)
store_tile(5, ACC+16)
single(6, 1, ACC+32)
store_tile(6, ACC+32)

txt = HEADER % LDS + "\n".join(out) + "\n" + FOOTER % (256+32, 48)
open(sys.argv[1], "w").write(txt)
```

```python
import sys

HEADER = """; Kernarg layout for this problem (56 bytes, ptrs only, base s[0:1]):
; @launch grid=(256,1,1) block=(256,1,1) lds=%d
.amdgcn_target "amdgcn-amd-amdhsa--gfx950"
.text
.globl standalone__layernorm_linear__sampling_kernel
.p2align 8
.type standalone__layernorm_linear__sampling_kernel,@function
standalone__layernorm_linear__sampling_kernel:
"""
FOOTER = """L_end:
s_endpgm
.section .rodata,"a"
.p2align 6
.amdhsa_kernel standalone__layernorm_linear__sampling_kernel
  .amdhsa_next_free_vgpr %d
  .amdhsa_next_free_sgpr %d
  .amdhsa_accum_offset 256
  .amdhsa_group_segment_fixed_size 0
  .amdhsa_kernarg_size 56
  .amdhsa_user_sgpr_count 2
  .amdhsa_user_sgpr_kernarg_segment_ptr 1
  .amdhsa_system_sgpr_workgroup_id_x 1
  .amdhsa_float_denorm_mode_32 3
  .amdhsa_float_denorm_mode_16_64 3
.end_amdhsa_kernel
"""

out = []
def e(s):
    out.append("    " + s)
STAMPS = len(sys.argv) > 2 and sys.argv[2] in ("stamps", "dbg")
DBG = len(sys.argv) > 2 and sys.argv[2] == "dbg"
nstamp = [0]
def stamp():
    if STAMPS:
        j = nstamp[0]; nstamp[0] += 1
        e(f"s_memrealtime s[{50+2*j}:{51+2*j}]")
        e("s_waitcnt lgkmcnt(0)")

RB = 896
XBYTES = 16384 * RB
WBYTES = 448 * RB
TILEB = 448 * 64
GB = 5 * TILEB
LDS = GB + 4096

sX, sW, sO, sG, sB = 16, 20, 24, 28, 32
s_wave = 36
s_xoff0, s_xoff1 = 37, 38
s_woff = 39
s_tmp = 40
s_tmp2 = 41
s_ooff0, s_ooff1 = 42, 43
s_m0base = 44
s_mask = 45

X0 = 0
def X(G, i): return X0 + (i*2+G)*4
ACC = 112
GBR = 176
T = 192
v_xoff = 208
v_woff = 209
v_tr = [210, 211, 212]
v_gb = 213
v_ooff = 214
v_p = [216, 218]
v_sum = [220, 222]
v_sq = [224, 226]
v_rs = [228, 230]
v_nm = [232, 234]
v_l = 236
v_t2 = 237
v_t3 = 238
v_t4 = 239
PK = 240

e("s_cmp_ge_u32 s2, 256")
e("s_cbranch_scc1 L_end")
stamp()
e("s_load_dwordx8 s[4:11], s[0:1], 0")
if STAMPS: e("s_load_dwordx2 s[14:15], s[0:1], %d" % (40 if DBG else 48))
e("s_load_dwordx2 s[12:13], s[0:1], 32")
e(f"v_lshrrev_b32 v{v_t2}, 6, v0")
e(f"v_and_b32 v{v_l}, 63, v0")
e(f"v_readfirstlane_b32 s{s_wave}, v{v_t2}")
e(f"s_lshr_b32 s{s_tmp}, s2, 4")
e(f"s_lshl_b32 s{s_tmp}, s{s_tmp}, 3")
e(f"s_and_b32 s{s_tmp2}, s2, 7")
e(f"s_add_u32 s{s_tmp}, s{s_tmp}, s{s_tmp2}")
e(f"s_lshl_b32 s{s_tmp}, s{s_tmp}, 2")
e(f"s_add_u32 s{s_tmp}, s{s_tmp}, s{s_wave}")
e(f"s_mul_i32 s{s_xoff0}, s{s_tmp}, {32*RB}")
e(f"s_add_u32 s{s_xoff1}, s{s_xoff0}, {16*RB}")
e(f"s_lshr_b32 s{s_tmp2}, s2, 3")
e(f"s_and_b32 s{s_tmp2}, s{s_tmp2}, 1")
e(f"s_mul_i32 s{s_tmp2}, s{s_tmp2}, 448")
e(f"s_add_u32 s{s_ooff0}, s{s_xoff0}, s{s_tmp2}")
e(f"s_add_u32 s{s_ooff1}, s{s_xoff1}, s{s_tmp2}")
e(f"s_mul_i32 s{s_woff}, s{s_wave}, {16*RB}")
e(f"s_add_u32 s{s_woff}, s{s_woff}, s{s_tmp2}")
e(f"s_lshl_b32 s{s_m0base}, s{s_wave}, 10")
e(f"s_mov_b32 s{s_mask}, 0xffff0000")
e(f"v_and_b32 v{v_t2}, 15, v{v_l}")
e(f"v_mul_u32_u24 v{v_t2}, {RB}, v{v_t2}")
e(f"v_lshrrev_b32 v{v_t3}, 4, v{v_l}")
e(f"v_lshl_add_u32 v{v_xoff}, v{v_t3}, 4, v{v_t2}")
e(f"v_lshlrev_b32 v{v_gb}, 6, v{v_t3}")
e(f"v_add_u32 v{v_gb}, {GB}, v{v_gb}")
e(f"v_lshrrev_b32 v{v_t3}, 2, v{v_l}")
e(f"v_mul_u32_u24 v{v_t3}, {RB}, v{v_t3}")
e(f"v_and_b32 v{v_t4}, 3, v{v_l}")
e(f"v_lshl_add_u32 v{v_woff}, v{v_t4}, 4, v{v_t3}")
e(f"v_lshrrev_b32 v{v_t3}, 5, v{v_l}")
e(f"v_lshlrev_b32 v{v_tr[0]}, 10, v{v_t3}")
e(f"v_bfe_u32 v{v_t3}, v{v_l}, 2, 2")
e(f"v_lshl_add_u32 v{v_tr[0]}, v{v_t3}, 6, v{v_tr[0]}")
e(f"v_and_b32 v{v_t3}, 1, v{v_l}")
e(f"v_lshl_add_u32 v{v_tr[0]}, v{v_t3}, 5, v{v_tr[0]}")
e(f"v_bfe_u32 v{v_t3}, v{v_l}, 4, 1")
e(f"v_lshl_add_u32 v{v_tr[0]}, v{v_t3}, 4, v{v_tr[0]}")
e(f"v_bfe_u32 v{v_t3}, v{v_l}, 1, 1")
e(f"v_lshl_add_u32 v{v_tr[0]}, v{v_t3}, 3, v{v_tr[0]}")
e(f"v_add_u32 v{v_tr[1]}, 0x10000, v{v_tr[0]}")
e(f"v_add_u32 v{v_tr[2]}, 0x20000, v{v_tr[0]}")
e("s_waitcnt lgkmcnt(0)")
def srd(s, lo, nbytes):
    e(f"s_mov_b32 s{s}, s{lo}")
    e(f"s_and_b32 s{s+1}, s{lo+1}, 0xffff")
    e(f"s_mov_b32 s{s+2}, {nbytes}")
    e(f"s_mov_b32 s{s+3}, 0x20000")
stamp()
srd(sX, 4, XBYTES)
srd(sG, 6, 896)
srd(sB, 8, 896)
srd(sW, 10, WBYTES)
srd(sO, 12, XBYTES)
e(f"v_lshlrev_b32 v{v_t3}, 4, v{v_l}")
e(f"buffer_load_dwordx4 v[{T}:{T+3}], v{v_t3}, s[{sG}:{sG+3}], 0 offen")
e(f"buffer_load_dwordx4 v[{T+4}:{T+7}], v{v_t3}, s[{sB}:{sB+3}], 0 offen")
e(f"buffer_load_ushort v{v_p[0]}, v{v_t2}, s[{sX}:{sX+3}], s{s_xoff0} offen")
e(f"buffer_load_ushort v{v_p[1]}, v{v_t2}, s[{sX}:{sX+3}], s{s_xoff1} offen")
for i in range(14):
    for G in range(2):
        so = s_xoff0 if G == 0 else s_xoff1
        e(f"buffer_load_dwordx4 v[{X(G,i)}:{X(G,i)+3}], v{v_xoff}, s[{sX}:{sX+3}], s{so} offen offset:{i*64}")
nvm = 4 + 28
def dma(t, slot, q):
    e(f"s_add_u32 m0, s{s_m0base}, {slot*TILEB + q*4096}")
    e(f"s_add_u32 s{s_tmp}, s{s_woff}, {t*64 + q*64*RB}")
    e(f"buffer_load_dwordx4 v{v_woff}, s[{sW}:{sW+3}], s{s_tmp} offen lds")
for q in range(7):
    for t in range(4):
        dma(t, t, q)
stamp()
e("s_waitcnt vmcnt(58)")
e(f"v_lshlrev_b32 v{v_t3}, 6, v{v_l}")
e(f"v_add_u32 v{v_t3}, {GB}, v{v_t3}")
for which in range(2):
    for d in range(4):
        src = T + which*4 + d
        e(f"v_lshlrev_b32 v{GBR+which*8+2*d}, 16, v{src}")
        e(f"v_and_b32 v{GBR+which*8+2*d+1}, s{s_mask}, v{src}")
for q in range(4):
    e(f"ds_write_b128 v{v_t3}, v[{GBR+4*q}:{GBR+4*q+3}] offset:{16*q}")
e("s_waitcnt vmcnt(56)")
for G in range(2):
    e(f"v_lshlrev_b32 v{v_p[G]}, 16, v{v_p[G]}")
    e(f"v_mov_b32 v{v_sum[G]}, 0")
    e(f"v_mov_b32 v{v_sum[G]+1}, 0")
    e(f"v_mov_b32 v{v_sq[G]}, 0")
    e(f"v_mov_b32 v{v_sq[G]+1}, 0")
stamp()
for i in range(14):
    for G in range(2):
        idx = i*2+G
        e(f"s_waitcnt vmcnt({56 - idx - 1})")
        for d in range(4):
            src = X(G,i)+d
            tt = T + 2*d
            e(f"v_lshlrev_b32 v{tt}, 16, v{src}")
            e(f"v_and_b32 v{tt+1}, s{s_mask}, v{src}")
        for d in range(4):
            tt = T + 2*d
            e(f"v_pk_add_f32 v[{tt}:{tt+1}], v[{tt}:{tt+1}], v[{v_p[G]}:{v_p[G]+1}] op_sel_hi:[1,0] neg_lo:[0,1] neg_hi:[0,1]")
        for d in range(4):
            tt = T + 2*d
            e(f"v_pk_add_f32 v[{v_sum[G]}:{v_sum[G]+1}], v[{v_sum[G]}:{v_sum[G]+1}], v[{tt}:{tt+1}]")
            e(f"v_pk_fma_f32 v[{v_sq[G]}:{v_sq[G]+1}], v[{tt}:{tt+1}], v[{tt}:{tt+1}], v[{v_sq[G]}:{v_sq[G]+1}]")
stamp()
for q in range(7):
    dma(4, 4, q)
for r in (v_sum, v_sq):
    for G in range(2):
        e(f"v_add_f32 v{r[G]}, v{r[G]}, v{r[G]+1}")
for r in (v_sum, v_sq):
    a, b = r[0], r[1]
    e("s_nop 1")
    e(f"v_permlane16_swap_b32 v{a}, v{b}")
    e("s_nop 1")
    e(f"v_add_f32 v{a}, v{a}, v{b}")
    e(f"v_mov_b32 v{b}, v{a}")
    e("s_nop 1")
    e(f"v_permlane32_swap_b32 v{a}, v{b}")
    e("s_nop 1")
    e(f"v_add_f32 v{a}, v{a}, v{b}")
    e(f"v_mov_b32 v{b}, v{a}")
    e("s_nop 1")
    e(f"v_permlane16_swap_b32 v{a}, v{b}")
    e("s_nop 1")
inv = 1.0/448
import struct
def f2u(f): return struct.unpack("<I", struct.pack("<f", f))[0]
for G in range(2):
    e(f"v_mul_f32 v{v_sum[G]}, 0x{f2u(inv):08x}, v{v_sum[G]}")
    e(f"v_mul_f32 v{v_sq[G]}, 0x{f2u(inv):08x}, v{v_sq[G]}")
    e(f"v_fma_f32 v{v_sq[G]}, -v{v_sum[G]}, v{v_sum[G]}, v{v_sq[G]}")
    e(f"v_max_f32 v{v_sq[G]}, 0, v{v_sq[G]}")
    e(f"v_add_f32 v{v_sq[G]}, 0x{f2u(1e-5):08x}, v{v_sq[G]}")
    e(f"v_rsq_f32 v{v_rs[G]}, v{v_sq[G]}")
    e(f"v_add_f32 v{v_sum[G]}, v{v_sum[G]}, v{v_p[G]}")
    e(f"v_mul_f32 v{v_nm[G]}, v{v_sum[G]}, v{v_rs[G]}")
    e(f"v_sub_f32 v{v_nm[G]}, 0, v{v_nm[G]}")
e("s_waitcnt vmcnt(7) lgkmcnt(0)")
stamp()
e("s_barrier")
stamp()

def normalize(i):
    for q in range(4):
        e(f"ds_read_b128 v[{GBR+4*q}:{GBR+4*q+3}], v{v_gb} offset:{i*256 + q*16}")
    for G in range(2):
        for d in range(4):
            src = X(G,i)+d
            tt = T + G*8 + 2*d
            e(f"v_lshlrev_b32 v{tt}, 16, v{src}")
            e(f"v_and_b32 v{tt+1}, s{s_mask}, v{src}")
        for d in range(4):
            tt = T + G*8 + 2*d
            e(f"v_pk_fma_f32 v[{tt}:{tt+1}], v[{tt}:{tt+1}], v[{v_rs[G]}:{v_rs[G]+1}], v[{v_nm[G]}:{v_nm[G]+1}] op_sel_hi:[1,0,0]")
    e("s_waitcnt lgkmcnt(0)")
    for G in range(2):
        for d in range(4):
            tt = T + G*8 + 2*d
            e(f"v_pk_fma_f32 v[{tt}:{tt+1}], v[{tt}:{tt+1}], v[{GBR+2*d}:{GBR+2*d+1}], v[{GBR+8+2*d}:{GBR+8+2*d+1}]")
        for d in range(4):
            tt = T + G*8 + 2*d
            e(f"v_cvt_pk_bf16_f32 v{X(G,i)+d}, v{tt}, v{tt+1}")
    e("s_nop 1")
    for d in range(4):
        e(f"v_permlane16_swap_b32 v{X(0,i)+d}, v{X(1,i)+d}")

def trread(areg, slot, s):
    i, u = s >> 1, s & 1
    off = slot*TILEB + i*2048 + u*512
    for half in range(2):
        o = off + half*256
        seg = o >> 16
        e(f"ds_read_b64_tr_b16 a[{areg+2*half}:{areg+2*half+1}], v{v_tr[seg]} offset:{o & 0xffff}")

def yfrag(s):
    i, u = s >> 1, s & 1
    return X(u, i)

def store_tile(t, acc):
    e("s_nop 15")
    for d in range(8):
        e(f"v_cvt_pk_bf16_f32 v{PK+d}, v{acc+2*d}, v{acc+2*d+1}")
    e("s_nop 1")
    for d in range(4):
        e(f"v_permlane16_swap_b32 v{PK+d}, v{PK+4+d}")
    e(f"buffer_store_dwordx4 v[{PK}:{PK+3}], v{v_xoff}, s[{sO}:{sO+3}], s{s_ooff0} offen offset:{t*64}")
    e(f"buffer_store_dwordx4 v[{PK+4}:{PK+7}], v{v_xoff}, s[{sO}:{sO+3}], s{s_ooff1} offen offset:{t*64}")
    e("s_nop 1")

for i in range(14):
    normalize(i)
    for u in range(2):
        s = 2*i+u
        for t in range(4):
            trread(u*16 + t*4, t, s)
    for u in range(2):
        s = 2*i+u
        e(f"s_waitcnt lgkmcnt({8 if u == 0 else 0})")
        for t in range(4):
            c = "0" if s == 0 else f"v[{ACC+16*t}:{ACC+16*t+15}]"
            e(f"v_mfma_f32_32x32x16_bf16 v[{ACC+16*t}:{ACC+16*t+15}], a[{u*16+t*4}:{u*16+t*4+3}], v[{yfrag(s)}:{yfrag(s)+3}], {c}")
stamp()
e("s_waitcnt vmcnt(0) lgkmcnt(0)")
e("s_barrier")
for q in range(7):
    dma(5, 0, q)
for q in range(7):
    dma(6, 1, q)
for t in range(4):
    store_tile(t, ACC+16*t)
def single(t, slot, acc):
    for s in range(4):
        trread(s*4, slot, s)
    for bt in range(7):
        cur = (bt & 1)*16
        nxt = 16 - cur
        if bt < 6:
            for s in range(4):
                trread(nxt + s*4, slot, (bt+1)*4 + s)
            e("s_waitcnt lgkmcnt(8)")
        else:
            e("s_waitcnt lgkmcnt(0)")
        for s in range(4):
            ks = bt*4 + s
            c = "0" if ks == 0 else f"v[{acc}:{acc+15}]"
            e(f"v_mfma_f32_32x32x16_bf16 v[{acc}:{acc+15}], a[{cur+s*4}:{cur+s*4+3}], v[{yfrag(ks)}:{yfrag(ks)+3}], {c}")
stamp()
single(4, 4, ACC)
stamp()
e("s_waitcnt vmcnt(8)")
e("s_barrier")
stamp()
store_tile(4, ACC)
single(5, 0, ACC+16)
store_tile(5, ACC+16)
single(6, 1, ACC+32)
store_tile(6, ACC+32)
stamp()
if STAMPS:
    e("s_waitcnt vmcnt(0)")
    stamp()
    n = nstamp[0]
    e(f"s_cmp_lg_u32 s{s_wave}, 0")
    e("s_cbranch_scc1 L_end")
    e("s_mov_b32 s28, s14")
    e("s_and_b32 s29, s15, 0xffff")
    e("s_mov_b32 s30, 0x100000")
    e(f"s_mul_i32 s{s_tmp}, s2, {n*8}")
    e("s_mov_b64 exec, 1")
    e("v_mov_b32 v2, 0")
    if DBG:
        e("s_cmp_lg_u32 s2, 100")
        e("s_cbranch_scc1 L_end")
        e("s_mov_b32 s30, 256")
        for j in range(n):
            e(f"s_sub_u32 s{s_tmp}, s{50+2*j}, s50")
            e(f"v_mov_b32 v0, s{s_tmp}")
            e(f"buffer_store_dword v0, v2, s[28:31], 0 offen offset:{j*4}")
            e("s_nop 1")
        n = 0
    for j in range(n):
        e(f"v_mov_b32 v0, s{50+2*j}")
        e(f"v_mov_b32 v1, s{51+2*j}")
        e(f"buffer_store_dwordx2 v[0:1], v2, s[28:31], s{s_tmp} offen offset:{j*8}")
        e("s_nop 1")
    print("stamps", n)

txt = HEADER % LDS + "\n".join(out) + "\n" + FOOTER % (256+32, 96)
open(sys.argv[1], "w").write(txt)
```
